```python
import torch

def _softmax(x, axis=-1):
    return torch.softmax(x, dim=axis)
def _gelu(x):
    return torch.nn.functional.gelu(x, approximate="tanh")
def _silu(x):
    return torch.nn.functional.silu(x)
def _sigmoid(x):
    return torch.sigmoid(x)
def _layernorm(x, axis=-1, eps=1e-5):
    m = x.mean(dim=axis, keepdim=True)
    v = x.var(dim=axis, keepdim=True, unbiased=False)
    return (x - m) / torch.sqrt(v + eps)
def _scatter_add(tgt, idx, src, axis=0):
    return tgt.clone().index_add_(axis, idx, src)
def _segment_sum(src, seg, n):
    out = torch.zeros((n,) + src.shape[1:], dtype=src.dtype)
    return out.index_add_(0, seg, src)
def _pad(x, pw):
    flat = tuple(v for pair in reversed(pw) for v in pair)
    return torch.nn.functional.pad(x, flat)

kernel_name = 'gated_mix__ssm_conv_s4__swiglu_ffn__prompt'

def setup_inputs():

    _w = (lambda a: (lambda t: t.to(torch.bfloat16) if t.is_floating_point() else t)(torch.as_tensor(a)))
    def _A_setup():
        B, L, D, N = 1, 2048, 512, 128
        A_re = -(lambda _x: torch.exp(torch.as_tensor(_x)))((lambda *s: torch.randn(*s, dtype=torch.bfloat16) * 3.2)(D, N))
        A_im = torch.pi * (lambda *s: torch.randn(*s, dtype=torch.bfloat16) * 0.05)(D, N)
        B_re = (lambda *s: torch.randn(*s, dtype=torch.bfloat16) * 0.1)(D, N)
        B_im = (lambda *s: torch.randn(*s, dtype=torch.bfloat16) * 0.1)(D, N)
        C_re = (lambda *s: torch.randn(*s, dtype=torch.bfloat16) * 0.1)(D, N)
        C_im = (lambda *s: torch.randn(*s, dtype=torch.bfloat16) * 0.1)(D, N)
        log_dt = (lambda *s: torch.randn(*s, dtype=torch.bfloat16) * 0.05)(D) * 0.5 - 4.0
        Dskip = (lambda *s: torch.randn(*s, dtype=torch.bfloat16) * 0.05)(D)
        return {
            "u": _w((lambda *s: torch.randn(*s, dtype=torch.bfloat16) * 0.05)(B, L, D)),
            "A_re": _w(A_re),
            "A_im": _w(A_im),
            "B_re": _w(B_re),
            "B_im": _w(B_im),
            "C_re": _w(C_re),
            "C_im": _w(C_im),
            "log_dt": _w(log_dt),
            "Dskip": _w(Dskip),
        }
    _A_in = _A_setup()

    def _B_setup():
        B, S, D, F = 1, 2048, 512, 1792
        return {
            "x": _w((lambda *s: torch.randn(*s, dtype=torch.bfloat16) * 0.05)(B, S, D)),
            "w_gate": _w((lambda *s: torch.randn(*s, dtype=torch.bfloat16) * 0.05)(D, F)),
            "w_up": _w((lambda *s: torch.randn(*s, dtype=torch.bfloat16) * 0.05)(D, F)),
            "w_down": _w((lambda *s: torch.randn(*s, dtype=torch.bfloat16) * 0.05)(F, D)),
        }
    _B_in = _B_setup()

    return {
        "A_u": _A_in["u"],
        "A_A_re": _A_in["A_re"],
        "A_A_im": _A_in["A_im"],
        "A_B_re": _A_in["B_re"],
        "A_B_im": _A_in["B_im"],
        "A_C_re": _A_in["C_re"],
        "A_C_im": _A_in["C_im"],
        "A_log_dt": _A_in["log_dt"],
        "A_Dskip": _A_in["Dskip"],
        "B_x": _B_in["x"],
        "B_w_gate": _B_in["w_gate"],
        "B_w_up": _B_in["w_up"],
        "B_w_down": _B_in["w_down"],
        "gate_w": _w((lambda *s: torch.randn(*s, dtype=torch.bfloat16) * 0.05)(512) * 16.0),
    }

def reference(A_u, A_A_re, A_A_im, A_B_re, A_B_im, A_C_re, A_C_im, A_log_dt, A_Dskip, B_x, B_w_gate, B_w_up, B_w_down, gate_w):
    def _A_ref(u, A_re, A_im, B_re, B_im, C_re, C_im, log_dt, Dskip):
        Bsz, L, D = u.shape
        dt = torch.exp(log_dt)[:, None]
        A = A_re + 1j * A_im
        Bc = B_re + 1j * B_im
        Cc = C_re + 1j * C_im
        logdA = dt * A
        dB = dt * Bc
        l = (lambda x, dt: x.to(dt))(torch.arange(L), A_re.dtype)
        P = torch.exp(logdA[:, :, None] * l[None, None, :])
        K = torch.einsum("dn,dnl,dn->dl", Cc, P, dB).real
        L2 = 2 * L
        Kp = _pad(K, ((0, 0), (0, L)))
        up = (lambda x, *d: x.permute(*d))(u, 0, 2, 1)
        up = _pad(up, ((0, 0), (0, 0), (0, L)))
        Kf = (lambda x, axes=(-2,-1): torch.fft.rfft2(x.float(), dim=axes))(Kp[:, None, :], axes=(-2, -1))
        Uf = (lambda x, axes=(-2,-1): torch.fft.rfft2(x.float(), dim=axes))(up[:, :, None, :], axes=(-2, -1))
        Yf = Uf * Kf[None, :, :, :]
        y = (lambda x, s, axes=(-2,-1): torch.fft.irfft2(x, s=s, dim=axes).to(torch.bfloat16))(Yf, (1, L2), axes=(-2, -1))[:, :, 0, :L]
        y = (lambda x, *d: x.permute(*d))(y, 0, 2, 1) + u * Dskip[None, None, :]
        return y

    def _B_ref(x, w_gate, w_up, w_down):
        g = _silu(x @ w_gate)
        u = x @ w_up
        return (g * u) @ w_down

    x = A_u
    g = _sigmoid((x * gate_w).sum(-1, keepdims=True))
    a = _A_ref(x, A_A_re, A_A_im, A_B_re, A_B_im, A_C_re, A_C_im, A_log_dt, A_Dskip)
    b = _B_ref(x, B_w_gate, B_w_up, B_w_down)
    return g * a + (1 - g) * b
```

```python
class Asm:
    def __init__(self):
        self.lines = []
        self.nlabel = 0
    def __call__(self, s):
        for ln in s.strip("\n").split("\n"):
            self.lines.append("    " + ln.strip() if not ln.strip().endswith(":") else ln.strip())
    def c(self, s):
        self.lines.append("    ; " + s)
    def label(self, prefix="L"):
        self.nlabel += 1
        return "%s_%d" % (prefix, self.nlabel)
    def text(self):
        return "\n".join(self.lines) + "\n"

HEADER_COMMENT = open("gated_mix__ssm_conv_s4__swiglu_ffn__prompt.s.ref").read().split("; Override launch")[0]

def kernel_begin(name):
    return f""".globl {name}
.p2align 8
.type {name},@function
{name}:
"""

def kernel_desc(name, vgpr, sgpr=102, accum=None):
    if accum is None:
        accum = min(256, (vgpr + 3) // 4 * 4)
    return f""".p2align 6
.amdhsa_kernel {name}
  .amdhsa_next_free_vgpr {vgpr}
  .amdhsa_next_free_sgpr {sgpr}
  .amdhsa_accum_offset {accum}
  .amdhsa_group_segment_fixed_size 0
  .amdhsa_kernarg_size 136
  .amdhsa_user_sgpr_count 2
  .amdhsa_user_sgpr_kernarg_segment_ptr 1
  .amdhsa_system_sgpr_workgroup_id_x 1
.end_amdhsa_kernel
"""

def build_file(kernels, launches):
    s = HEADER_COMMENT
    if len(launches) == 1 and launches[0][0] == "gated_mix__ssm_conv_s4__swiglu_ffn__prompt_kernel":
        n, g, b, l = launches[0]
        s += f"; @launch grid=({g},1,1) block=({b},1,1) lds={l}\n"
    else:
        for n, g, b, l in launches:
            s += f"; @launch kernel={n} grid=({g},1,1) block=({b},1,1) lds={l}\n"
    s += '.amdgcn_target "amdgcn-amd-amdhsa--gfx950"\n.text\n'
    for name, body, vgpr, sgpr, accum in kernels:
        s += kernel_begin(name) + body
    s += '.section .rodata,"a"\n'
    for name, body, vgpr, sgpr, accum in kernels:
        s += kernel_desc(name, vgpr, sgpr, accum)
    return s

P = dict(u=16, are=18, aim=20, bre=22, bim=24, cre=26, cim=28, logdt=30, dskip=32, bx=34,
         wg=36, wu=38, wd=40, gw=42, out=44, dbg=46, ws=48)
def load_ptrs(a):
    a("s_load_dwordx16 s[16:31], s[0:1], 0")
    a("s_load_dwordx16 s[32:47], s[0:1], 64")
    a("s_load_dwordx2 s[48:49], s[0:1], 128")

def srd(a, d, ptr, nbytes, off=0):
    if off:
        a(f"s_add_u32 s{d}, s{ptr}, {off}")
        a(f"s_addc_u32 s{d+1}, s{ptr+1}, 0")
        a(f"s_and_b32 s{d+1}, s{d+1}, 0xffff")
    else:
        a(f"s_mov_b32 s{d}, s{ptr}")
        a(f"s_and_b32 s{d+1}, s{ptr+1}, 0xffff")
    a(f"s_mov_b32 s{d+2}, {nbytes}")
    a(f"s_mov_b32 s{d+3}, 0x00020000")
```

```python
from asmlib import *

WS_H = 0
WS_AT = 0x800000
WS_G = 0xA00000
LOG2E = 1.4426950408889634
import struct
def f32bits(x): return struct.unpack("<I", struct.pack("<f", x))[0]
def fhex(x): return "0x%08x" % f32bits(x)

def prologue(a, nwg=256):
    a(f"s_cmp_ge_u32 s2, {nwg}")
    a("s_cbranch_scc1 L_end")
    load_ptrs(a)
    a("v_lshrrev_b32 v1, 6, v0")
    a("v_and_b32 v0, 63, v0")
    a("s_nop 0")
    a("v_readfirstlane_b32 s3, v1")
    a("s_waitcnt lgkmcnt(0)")

G1_XS = 16384
G1_WB = 49152
G1_WS = 28800
G1_UP = 14464
G1_LDS = G1_WB + 3 * G1_WS
G1_NS = 8

def g1_map(a):
    a("s_and_b32 s4, s2, 7")
    a("s_lshr_b32 s5, s2, 3")
    a("s_and_b32 s6, s4, 1")
    a("s_lshr_b32 s7, s4, 1")
    a("s_and_b32 s8, s5, 7")
    a("s_lshl_b32 s6, s6, 3")
    a("s_add_u32 s8, s8, s6")
    a("s_lshr_b32 s9, s5, 3")
    a("s_lshl_b32 s7, s7, 2")
    a("s_add_u32 s9, s9, s7")

def g1_loader_setup(a, vb):
    a("s_sub_u32 s12, s3, 4")
    srd(a, 64, P['u'], 2048 * 1024)
    a("s_and_b32 s10, s12, 1")
    a("s_cmp_eq_u32 s10, 0")
    a(f"s_cselect_b32 s68, s{P['wg']}, s{P['wu']}")
    a(f"s_cselect_b32 s69, s{P['wg']+1}, s{P['wu']+1}")
    a("s_and_b32 s69, s69, 0xffff")
    a(f"s_mov_b32 s70, {512*3584}")
    a("s_mov_b32 s71, 0x00020000")
    a("v_lshrrev_b32 v3, 3, v0")
    a("v_and_b32 v4, 7, v0")
    a("v_lshrrev_b32 v5, 1, v3")
    a("v_xor_b32 v6, v4, v5")
    a("v_lshlrev_b32 v6, 4, v6")
    a(f"v_lshl_add_u32 v{vb}, v3, 10, v6")
    a(f"v_xor_b32 v{vb+1}, 64, v{vb}")
    for j in range(7):
        a(f"v_add_u32 v3, {64*j}, v0")
        a("v_mul_u32_u24 v4, 4682, v3")
        a("v_lshrrev_b32 v4, 16, v4")
        a("v_mul_u32_u24 v5, 14, v4")
        a("v_sub_u32 v5, v3, v5")
        a("v_mul_u32_u24 v4, 3584, v4")
        a(f"v_lshl_add_u32 v{vb+2+j}, v5, 4, v4")
    a("s_lshl_b32 s72, s8, 17")
    a("s_lshl_b32 s11, s12, 15")
    a("s_add_u32 s72, s72, s11")
    a("s_lshr_b32 s11, s12, 1")
    a(f"s_mul_i32 s73, s11, {32*3584}")
    a("s_mul_i32 s13, s9, 224")
    a("s_add_u32 s73, s73, s13")
    a("s_lshl_b32 s74, s12, 12")
    a(f"s_mul_i32 s75, s10, {G1_UP}")
    a("s_mul_i32 s11, s11, 7168")
    a("s_add_u32 s75, s75, s11")
    a(f"s_add_u32 s75, s75, {G1_WB}")

def g1_issue(a, s, vb):
    sl = s % 3
    for i in range(4):
        a(f"s_add_u32 m0, s74, {sl*G1_XS + i*1024}")
        a(f"s_add_u32 s76, s72, {i*8192 + s*128}")
        a(f"buffer_load_dwordx4 v{vb + (i&1)}, s[64:67], s76 offen lds")
    a(f"s_add_u32 s76, s73, {s*64*3584}")
    for j in range(7):
        a(f"s_add_u32 m0, s75, {sl*G1_WS + j*1024}")
        a("s_nop 0")
        a(f"buffer_load_dwordx4 v{vb+2+j}, s[68:71], s76 offen lds")

def g1_loader(a, vb=10, slotwork=None):
    g1_loader_setup(a, vb)
    for s in range(3):
        g1_issue(a, s, vb)
    for k in range(G1_NS):
        newer = min(G1_NS - 1, max(2, k + 1)) - k
        a(f"s_waitcnt vmcnt({11*newer})")
        a("s_barrier")
        if k >= 1 and k + 2 < G1_NS:
            g1_issue(a, k + 2, vb)

G1_ACC = 128
G1_OP = 64
G1_AD = 40

def g1_consumer(a):
    AD = G1_AD
    a("s_and_b32 s10, s3, 1")
    a("s_lshr_b32 s11, s3, 1")
    a("v_and_b32 v2, 31, v0")
    a("v_lshrrev_b32 v3, 5, v0")
    a("s_lshl_b32 s12, s10, 1")
    a("s_add_u32 s13, s12, s11")
    a("s_xor_b32 s14, s13, 1")
    for t, sm in ((0, 13), (1, 14)):
        a(f"s_lshl_b32 s15, s{sm}, 5")
        a("v_add_u32 v4, s15, v2")
        a("v_bfe_u32 v5, v4, 1, 3")
        a("v_xor_b32 v5, v5, v3")
        a("v_lshlrev_b32 v5, 4, v5")
        a(f"v_lshl_add_u32 v{AD+4*t}, v4, 7, v5")
        for sub in range(1, 4):
            a(f"v_xor_b32 v{AD+4*t+sub}, {sub<<5}, v{AD+4*t}")
    a("v_bfe_u32 v4, v0, 4, 1")
    a("v_bfe_u32 v5, v0, 2, 2")
    a("v_lshl_add_u32 v5, v3, 3, v5")
    a("v_mul_u32_u24 v5, 224, v5")
    a(f"v_mul_u32_u24 v4, {G1_UP}, v4")
    a("v_and_b32 v6, 3, v0")
    a("v_lshl_add_u32 v5, v6, 3, v5")
    a("v_add_u32 v5, v5, v4")
    a("s_lshl_b32 s15, s11, 7")
    for sl in range(3):
        a(f"v_add_u32 v{AD+11+sl}, {G1_WB + sl*G1_WS + 96}, v5")
        a(f"v_add_u32 v6, {G1_WB + sl*G1_WS}, v5")
        a(f"v_add_u32 v{AD+8+sl}, s15, v6")
    def reads(s, sub, st):
        sl = s % 3
        o = G1_OP + 24 * st
        L = []
        for t in range(2):
            L.append(f"ds_read_b128 v[{o+16+4*t}:{o+19+4*t}], v{AD+4*t+sub} offset:{sl*G1_XS}")
        for jj in range(4):
            for sec in range(2):
                off = (16 * sub + 4 * sec) * 224 + (32 * jj if jj < 3 else 0)
                base = AD + 8 + sl if jj < 3 else AD + 11 + sl
                L.append(f"ds_read_b64_tr_b16 v[{o+4*jj+2*sec}:{o+4*jj+2*sec+1}], v{base} offset:{off}")
        return L
    def mfmas(st, first):
        o = G1_OP + 24 * st
        L = []
        idx = 0
        for jj in range(4):
            for t in range(2 if jj < 3 else 1):
                c = G1_ACC + 16 * idx
                src = "0" if first else f"v[{c}:{c+15}]"
                L.append(f"v_mfma_f32_32x32x16_bf16 v[{c}:{c+15}], v[{o+4*jj}:{o+4*jj+3}], v[{o+16+4*t}:{o+19+4*t}], {src}")
                idx += 1
        return L
    a("s_barrier")
    for r in reads(0, 0, 0):
        a(r)
    step = 0
    for s in range(G1_NS):
        for sub in range(4):
            st = step & 1
            a("s_waitcnt lgkmcnt(0)")
            nxt = None
            if sub < 3:
                nxt = reads(s, sub + 1, st ^ 1)
            elif s + 1 < G1_NS:
                a("s_barrier")
                nxt = reads(s + 1, 0, st ^ 1)
            M = mfmas(st, step == 0)
            nxt = nxt or []
            for i, m in enumerate(M):
                a(m)
                for r in nxt[2*i:2*i+2]:
                    a(r)
            step += 1

def g1_epilogue(a, sc1=False):
    srd(a, 64, P['ws'], 2048 * 3584, off=WS_H)
    a("v_and_b32 v2, 31, v0")
    a("v_lshrrev_b32 v3, 5, v0")
    for t, sm in ((0, 13), (1, 14)):
        a(f"s_lshl_b32 s15, s{sm}, 5")
        a("v_add_u32 v4, s15, v2")
        a("v_mul_u32_u24 v4, 3584, v4")
        a(f"v_lshl_add_u32 v{8+t}, v3, 4, v4")
    a(f"s_mul_i32 s72, s8, {128*3584}")
    a("s_mul_i32 s73, s9, 224")
    a("s_add_u32 s72, s72, s73")
    a("s_lshl_b32 s15, s11, 7")
    a("s_add_u32 s73, s72, s15")
    a(f"s_mov_b32 s74, {fhex(-LOG2E)}")
    a("s_nop 7")
    a("s_nop 3")
    idx = 0
    for jj in range(4):
        for t in range(2 if jj < 3 else 1):
            c = G1_ACC + 16 * idx
            T = 16 + 12 * (idx & 1)
            for e in range(8):
                a(f"v_mul_f32 v{T+e}, s74, v{c+e}")
            for e in range(8):
                a(f"v_exp_f32 v{T+e}, v{T+e}")
            for e in range(8):
                a(f"v_mul_f32 v{c+e}, v{c+e}, v{c+8+e}")
            for e in range(8):
                a(f"v_add_f32 v{T+e}, 1.0, v{T+e}")
            for e in range(8):
                a(f"v_rcp_f32 v{T+e}, v{T+e}")
            a("s_nop 0")
            for e in range(8):
                a(f"v_mul_f32 v{c+e}, v{c+e}, v{T+e}")
            for e in range(4):
                a(f"v_cvt_pk_bf16_f32 v{T+8+e}, v{c+2*e}, v{c+2*e+1}")
            a("s_nop 1")
            a(f"v_permlane32_swap_b32 v{T+8}, v{T+10}")
            a(f"v_permlane32_swap_b32 v{T+9}, v{T+11}")
            so, off = ("s73", 32 * jj) if jj < 3 else ("s72", 96)
            a(f"buffer_store_dwordx4 v[{T+8}:{T+11}], v{8+t}, s[64:67], {so} offen offset:{off}" + (" sc1" if sc1 else ""))
            idx += 1

G2_NS = 14
G2_HS = 16384
G2_WB = 65536
G2_AT = 131072
G2_RED = 0
G2_LDS = G2_AT + 8192

def g2_map(a):
    a("s_and_b32 s4, s2, 7")
    a("s_lshr_b32 s5, s2, 3")
    a("s_and_b32 s8, s5, 3")
    a("s_lshl_b32 s4, s4, 2")
    a("s_add_u32 s8, s8, s4")
    a("s_lshr_b32 s9, s5, 2")

def g2_loader_setup(a, vb):
    a("s_sub_u32 s12, s3, 4")
    srd(a, 64, P['ws'], 2048 * 3584, off=WS_H)
    srd(a, 68, P['wd'], 1792 * 1024)
    srd(a, 56, P['ws'], 512 * 4096, off=WS_AT)
    a("v_lshrrev_b32 v3, 4, v0")
    a("v_and_b32 v4, 15, v0")
    a("v_xor_b32 v4, v4, v3")
    a("s_lshl_b32 s13, s12, 2")
    a("v_xor_b32 v4, s13, v4")
    a("v_add_u32 v3, s13, v3")
    a("v_mul_u32_u24 v3, 3584, v3")
    a(f"v_lshl_add_u32 v{vb}, v4, 4, v3")
    a("v_lshrrev_b32 v3, 3, v0")
    a("v_and_b32 v4, 7, v0")
    a("v_bfe_u32 v5, v0, 4, 1")
    a("v_lshlrev_b32 v5, 2, v5")
    a("v_xor_b32 v4, v4, v5")
    a("v_lshlrev_b32 v4, 4, v4")
    a(f"v_lshl_add_u32 v{vb+1}, v3, 10, v4")
    a(f"v_lshl_add_u32 v{vb+2}, v3, 12, v4")
    a(f"s_mul_i32 s72, s8, {64*3584}")
    a("s_lshl_b32 s73, s9, 7")
    a("s_lshl_b32 s13, s12, 15")
    a("s_add_u32 s73, s73, s13")
    a("s_lshl_b32 s74, s12, 10")
    a("s_lshl_b32 s75, s12, 12")
    a(f"s_add_u32 s75, s75, {G2_WB}")

def g2_issue_h(a, s, vb, sc1=False):
    sl = s % 4
    for i in range(4):
        a(f"s_add_u32 m0, s74, {sl*G2_HS + i*4096}")
        a(f"s_add_u32 s76, s72, {i*16*3584 + s*256}")
        a(f"buffer_load_dwordx4 v{vb}, s[64:67], s76 offen " + ("sc1 " if sc1 else "") + "lds")
def g2_issue_w(a, s, vb):
    sl = s % 4
    for i in range(4):
        a(f"s_add_u32 m0, s75, {sl*G2_HS + i*1024}")
        a(f"s_add_u32 s76, s73, {i*8192 + s*128*1024}")
        a(f"buffer_load_dwordx4 v{vb+1}, s[68:71], s76 offen lds")
def g2_issue_at(a, vb, sc1=False):
    a("s_lshl_b32 s13, s9, 18")
    a("s_lshl_b32 s14, s8, 7")
    a("s_add_u32 s13, s13, s14")
    a("s_lshl_b32 s14, s12, 16")
    a("s_add_u32 s13, s13, s14")
    a("s_lshl_b32 s14, s12, 11")
    for i in range(2):
        a(f"s_add_u32 m0, s14, {G2_AT + i*1024}")
        a(f"s_add_u32 s76, s13, {i*8*4096}")
        a(f"buffer_load_dwordx4 v{vb+2}, s[56:59], s76 offen " + ("sc1 " if sc1 else "") + "lds")

def g2_loader(a, vb=10):
    g2_loader_setup(a, vb)
    g2_issue_at(a, vb)
    for s in range(3):
        g2_issue_w(a, s, vb)
        g2_issue_h(a, s, vb)
    for k in range(G2_NS):
        newer = min(G2_NS - 1, k + 2) - k
        a(f"s_waitcnt vmcnt({8*newer})")
        a("s_barrier")
        if k + 3 < G2_NS:
            g2_issue_w(a, k + 3, vb)
            g2_issue_h(a, k + 3, vb)
    a("s_barrier")
    a("s_barrier")

G2_ACC = 160
G2_OP = 64
G2_AD = 40

def g2_consumer(a):
    AD = G2_AD
    a("s_and_b32 s10, s3, 1")
    a("s_lshr_b32 s11, s3, 1")
    a("v_and_b32 v2, 31, v0")
    a("v_lshrrev_b32 v3, 5, v0")
    a("s_lshl_b32 s14, s10, 3")
    for t in range(2):
        a(f"s_xor_b32 s13, s10, {t}")
        a("s_lshl_b32 s13, s13, 5")
        a("v_add_u32 v4, s13, v2")
        a("v_and_b32 v5, 15, v4")
        a("v_xor_b32 v5, v5, v3")
        a("v_xor_b32 v5, s14, v5")
        a("v_lshlrev_b32 v5, 4, v5")
        a(f"v_lshl_add_u32 v{AD+4*t}, v4, 8, v5")
        for i in range(1, 4):
            a(f"v_xor_b32 v{AD+4*t+i}, {i<<5}, v{AD+4*t}")
    a("v_bfe_u32 v4, v0, 4, 1")
    a("v_bfe_u32 v5, v0, 2, 2")
    a("v_and_b32 v6, 3, v0")
    a("v_lshlrev_b32 v6, 3, v6")
    a("v_lshl_add_u32 v6, v4, 5, v6")
    a("v_bfe_u32 v7, v0, 3, 1")
    a("v_lshlrev_b32 v7, 6, v7")
    a("v_xor_b32 v6, v6, v7")
    a("s_lshl_b32 s13, s11, 6")
    a("v_xor_b32 v7, s13, v6")
    a("v_lshl_add_u32 v5, v3, 3, v5")
    a("v_lshl_add_u32 v7, v5, 7, v7")
    a("s_lshl_b32 s13, s10, 13")
    a(f"s_add_u32 s13, s13, {G2_WB}")
    a(f"v_add_u32 v{AD+8}, s13, v7")
    a("v_bfe_u32 v5, v0, 2, 2")
    a("v_lshl_add_u32 v5, v3, 2, v5")
    a("s_lshl_b32 s13, s10, 6")
    a("v_xor_b32 v7, s13, v6")
    a("v_lshl_add_u32 v7, v5, 7, v7")
    a("s_lshl_b32 s13, s11, 12")
    a(f"s_add_u32 s13, s13, {G2_AT}")
    a(f"v_add_u32 v{AD+9}, s13, v7")
    def reads(s, st):
        sl = s % 4
        o = G2_OP + 48 * st
        L = []
        for i in range(4):
            for sec in range(2):
                L.append(f"ds_read_b64_tr_b16 v[{o+12*i+2*sec}:{o+12*i+2*sec+1}], v{AD+8} offset:{sl*G2_HS + (16*i + 4*sec)*128}")
            for t in range(2):
                L.append(f"ds_read_b128 v[{o+12*i+4+4*t}:{o+12*i+7+4*t}], v{AD+4*t+i} offset:{sl*G2_HS}")
        return L
    def mfmas(st, first):
        o = G2_OP + 48 * st
        L = []
        for i in range(4):
            for t in range(2):
                c = G2_ACC + 16 * t
                src = "0" if (first and i == 0) else f"v[{c}:{c+15}]"
                L.append(f"v_mfma_f32_32x32x16_bf16 v[{c}:{c+15}], v[{o+12*i}:{o+12*i+3}], v[{o+12*i+4+4*t}:{o+12*i+7+4*t}], {src}")
        return L
    for k in range(G2_NS + 1):
        a("s_barrier")
        R = reads(k, k & 1) if k < G2_NS else []
        M = mfmas((k - 1) & 1, k == 1) if k >= 1 else []
        if not M:
            for r in R: a(r)
        else:
            for i, m in enumerate(M):
                for r in R[2*i:2*i+2]:
                    a(r)
                a(m)
        a("s_waitcnt lgkmcnt(0)")

def g2_epilogue(a):
    AD = G2_AD
    srd(a, 64, P['out'], 2048 * 1024)
    srd(a, 68, P['ws'], 8192, off=WS_G)
    a("s_lshl_b32 s13, s8, 6")
    a("s_lshl_b32 s14, s10, 5")
    a("s_add_u32 s13, s13, s14")
    a("v_add_u32 v4, s13, v2")
    a("v_lshlrev_b32 v5, 2, v4")
    a("buffer_load_dword v8, v5, s[68:71], 0 offen")
    a("v_lshlrev_b32 v4, 10, v4")
    a("v_lshl_add_u32 v9, v3, 4, v4")
    a("s_lshl_b32 s72, s9, 7")
    a("s_lshl_b32 s14, s11, 6")
    a("s_add_u32 s72, s72, s14")
    a("v_lshlrev_b32 v6, 4, v0")
    a("s_xor_b32 s14, s3, 1")
    a("s_lshl_b32 s14, s14, 12")
    a("v_add_u32 v7, s14, v6")
    a("s_lshl_b32 s14, s3, 12")
    a("v_add_u32 v6, s14, v6")
    a("s_nop 7")
    a("s_nop 3")
    c1 = G2_ACC + 16
    for q in range(4):
        a(f"ds_write_b128 v7, v[{c1+4*q}:{c1+4*q+3}] offset:{G2_RED + q*1024}")
    for q in range(4):
        a(f"ds_read_b64_tr_b16 v[{16+2*q}:{17+2*q}], v{AD+9} offset:{q*8*128}")
    a("s_waitcnt lgkmcnt(0)")
    a("s_barrier")
    for q in range(4):
        a(f"ds_read_b128 v[{64+4*q}:{67+4*q}], v6 offset:{G2_RED + q*1024}")
    a("s_waitcnt vmcnt(0)")
    a("v_sub_f32 v10, 1.0, v8")
    a("v_cvt_pk_bf16_f32 v10, v10, v10")
    a("v_lshlrev_b32 v10, 16, v10")
    for q in range(4):
        for p in range(2):
            a(f"v_lshlrev_b32 v{24+4*q+2*p}, 16, v{16+2*q+p}")
            a(f"v_and_b32 v{24+4*q+2*p+1}, 0xffff0000, v{16+2*q+p}")
    for e in range(16):
        a(f"v_mul_f32 v{24+e}, v8, v{24+e}")
    a("s_waitcnt lgkmcnt(0)")
    c0 = G2_ACC
    for e in range(16):
        a(f"v_add_f32 v{c0+e}, v{c0+e}, v{64+e}")
    for e in range(16):
        a(f"v_fma_f32 v{24+e}, v10, v{c0+e}, v{24+e}")
    for e in range(8):
        a(f"v_cvt_pk_bf16_f32 v{16+e}, v{24+2*e}, v{24+2*e+1}")
    a("s_nop 1")
    for qq in range(2):
        a(f"v_permlane32_swap_b32 v{16+4*qq}, v{16+4*qq+2}")
        a(f"v_permlane32_swap_b32 v{16+4*qq+1}, v{16+4*qq+3}")
    for qq in range(2):
        a(f"buffer_store_dwordx4 v[{16+4*qq}:{19+4*qq}], v9, s[64:67], s72 offen offset:{32*qq}")
```

```python
from asmlib import *
from phases import *
import math

ROWB = 528
XT = 24 * ROWB
YT = 32 * ROWB
CHT = XT + YT
class SL:
    XY = 0
    KE = 2 * CHT
    UR = 2 * CHT + 12288
    RED = 0
    END = 2 * CHT + 12288 + 16640
KEB = 6144
URC = 4160
URB = 8320

XROW = {0:0,1:1,2:2,3:3,4:4,5:5,6:6,7:7, 256:8, 258:9, 512:10, 768:11, 260:12, 262:13, 516:14, 772:15,
        1024:16, 1280:17, 2048:18, 1536:20, 1792:21}

def ssm_map(a):
    a("s_and_b32 s4, s2, 7")
    a("s_lshr_b32 s5, s2, 3")
    a("s_lshl_b32 s4, s4, 6")
    a("s_lshl_b32 s5, s5, 1")
    a("s_add_u32 s50, s4, s5")

def ssm_param_loads(a, V):
    a("s_and_b32 s51, s3, 1")
    a("s_add_u32 s4, s50, s51")
    a("s_lshl_b32 s4, s4, 8")
    a("v_lshl_add_u32 v2, v0, 2, s4")
    a("s_lshl_b32 s5, s50, 1")
    a(f"s_load_dword s90, s[{P['logdt']}:{P['logdt']+1}], s5")
    a(f"s_load_dword s91, s[{P['dskip']}:{P['dskip']+1}], s5")
    for i, n in enumerate(["are", "aim", "bre", "bim", "cre", "cim"]):
        a(f"global_load_dword v{V+i}, v2, s[{P[n]}:{P[n]+1}]")

def wave_max(a, regs):
    for ctl in ["row_ror:8", "row_ror:4", "row_ror:2", "row_ror:1", "row_bcast:15 row_mask:0xa", "row_bcast:31 row_mask:0xc"]:
        a("s_nop 1")
        for r in regs:
            a(f"v_max_f32_dpp v{r}, v{r}, v{r} {ctl}")
    a("s_nop 1")

def unpack2(a, dst, src):
    a(f"v_lshlrev_b32 v{dst}, 16, v{src}")
    a(f"v_and_b32 v{dst+1}, 0xffff0000, v{src}")

def cpow(a, dst, e, AA, BB, T):
    for i in range(2):
        a(f"v_mul_f32 v{T+i}, {fhex(float(e))}, v{AA+i}")
        a(f"v_mul_f32 v{T+2+i}, {fhex(float(e))}, v{BB+i}")
    for i in range(2):
        a(f"v_exp_f32 v{T+i}, v{T+i}")
        a(f"v_fract_f32 v{T+2+i}, v{T+2+i}")
    for i in range(2):
        a(f"v_cos_f32 v{dst+i}, v{T+2+i}")
        a(f"v_sin_f32 v{dst+2+i}, v{T+2+i}")
    a("s_nop 0")
    a(f"v_pk_mul_f32 v[{dst}:{dst+1}], v[{dst}:{dst+1}], v[{T}:{T+1}]")
    a(f"v_pk_mul_f32 v[{dst+2}:{dst+3}], v[{dst+2}:{dst+3}], v[{T}:{T+1}]")

def cmul(a, d, x, z):
    a(f"v_pk_mul_f32 v[{d}:{d+1}], v[{x}:{x+1}], v[{z}:{z+1}]")
    a(f"v_pk_mul_f32 v[{d+2}:{d+3}], v[{x}:{x+1}], v[{z+2}:{z+3}]")
    a(f"v_pk_fma_f32 v[{d}:{d+1}], v[{x+2}:{x+3}], v[{z+2}:{z+3}], v[{d}:{d+1}] neg_lo:[1,0,0] neg_hi:[1,0,0]")
    a(f"v_pk_fma_f32 v[{d+2}:{d+3}], v[{x+2}:{x+3}], v[{z}:{z+1}], v[{d+2}:{d+3}]")

def ssm_gen_xy(a, V, R):
    AA, BB, T, DT, AD = R, R + 2, R + 4, R + 8, R + 9
    Z1, Z2, Z3 = R + 10, R + 14, R + 18
    C0, C1, C2 = R + 22, R + 26, R + 30
    PK0, PK1 = R + 34, R + 36
    WW = R + 38
    M1, M2 = R + 42, R + 43
    L2E_HI = f32bits(LOG2E)
    hi = struct.unpack("<f", struct.pack("<I", L2E_HI))[0]
    lo = LOG2E - hi
    a("s_waitcnt lgkmcnt(0)")
    a("s_lshl_b32 s4, s90, 16")
    a("s_and_b32 s5, s90, 0xffff0000")
    a("s_lshl_b32 s6, s91, 16")
    a("s_and_b32 s7, s91, 0xffff0000")
    a("s_cmp_eq_u32 s51, 0")
    a("s_cselect_b32 s90, s4, s5")
    a("s_cselect_b32 s91, s6, s7")
    a(f"v_mov_b32 v{T}, s90")
    a(f"s_mov_b32 s4, 0x{L2E_HI:08x}")
    a(f"v_mul_f32 v{T+1}, s4, v{T}")
    a(f"v_fma_f32 v{T+2}, v{T}, s4, -v{T+1}")
    a(f"v_fmac_f32 v{T+2}, {fhex(lo)}, v{T}")
    a(f"v_exp_f32 v{T+1}, v{T+1}")
    a(f"v_mul_f32 v{T+2}, {fhex(math.log(2.0))}, v{T+2}")
    a(f"v_fma_f32 v{T+1}, v{T+1}, v{T+2}, v{T+1}")
    a(f"v_cvt_pk_bf16_f32 v{DT}, v{T+1}, v{T+1}")
    a(f"v_lshlrev_b32 v{DT}, 16, v{DT}")
    a(f"s_mul_i32 s4, s51, {CHT}")
    a("s_cmp_lt_u32 s3, 4")
    a(f"s_cselect_b32 s5, {SL.XY + XT}, {SL.XY}")
    a("s_add_u32 s4, s4, s5")
    a(f"v_lshl_add_u32 v{AD}, v0, 3, s4")
    a("s_waitcnt vmcnt(0)")
    unpack2(a, AA, V + 0)
    unpack2(a, BB, V + 1)
    for i in range(2):
        a(f"v_mul_f32 v{AA+i}, v{DT}, v{AA+i}")
        a(f"v_mul_f32 v{BB+i}, v{DT}, v{BB+i}")
    for i in range(2):
        a(f"v_mul_f32 v{AA+i}, {fhex(LOG2E)}, v{AA+i}")
        a(f"v_mul_f32 v{BB+i}, 0.15915494, v{BB+i}")
    a(f"v_max_f32 v{M1}, v{AA}, v{AA+1}")
    lY, lX1, lY1, lDone = a.label("LY"), a.label("LX1"), a.label("LY1"), a.label("LXYD")
    def emit_row(c, row, pk, negim):
        n = "-" if negim else ""
        a(f"v_cvt_pk_f16_f32 v{pk}, v{c}, {n}v{c+2}")
        a(f"v_cvt_pk_f16_f32 v{pk+1}, v{c+1}, {n}v{c+3}")
        a(f"ds_write_b64 v{AD}, v[{pk}:{pk+1}] offset:{row*ROWB}")
    a("s_cmp_lt_u32 s3, 4")
    a(f"s_cbranch_scc1 {lY}")
    unpack2(a, C0, V + 2); unpack2(a, C0 + 2, V + 3)
    unpack2(a, C1, V + 4); unpack2(a, C1 + 2, V + 5)
    for i in range(4):
        a(f"v_mul_f32 v{C0+i}, v{DT}, v{C0+i}")
    cmul(a, WW, C1, C0)
    a(f"v_max3_f32 v{M2}, abs(v{WW}), abs(v{WW+1}), abs(v{WW+2})")
    a(f"v_max_f32 v{M2}, v{M2}, abs(v{WW+3})")
    wave_max(a, [M1, M2])
    a(f"v_readlane_b32 s92, v{M1}, 63")
    a(f"v_readlane_b32 s93, v{M2}, 63")
    a("s_nop 1")
    a(f"v_subrev_f32 v{AA}, s92, v{AA}")
    a(f"v_subrev_f32 v{AA+1}, s92, v{AA+1}")
    a("s_and_b32 s93, s93, 0x7f800000")
    a("s_max_u32 s93, s93, 0x00800000")
    a("s_min_u32 s93, s93, 0x7e800000")
    a("s_sub_u32 s4, 0x7f000000, s93")
    for i in range(4):
        a(f"v_mul_f32 v{WW+i}, s4, v{WW+i}")
    a("s_lshr_b32 s93, s93, 23")
    a("s_sub_u32 s93, s93, 127")
    a("s_cmp_ge_u32 s3, 6")
    a(f"s_cbranch_scc1 {lX1}")
    cpow(a, Z1, 1, AA, BB, T)
    cpow(a, Z2, 256, AA, BB, T)
    cmul(a, Z3, Z1, Z1)
    emit_row(WW, XROW[0], PK0, True)
    cur = WW
    for e in range(1, 8):
        nx = C0 if (e & 1) else C1
        cmul(a, nx, cur, Z1)
        emit_row(nx, XROW[e], PK0 if (e & 1) else PK1, True)
        cur = nx
    cmul(a, C2, WW, Z2)
    emit_row(C2, XROW[256], PK1, True)
    cur = C2
    for k, e in enumerate([258, 260, 262]):
        nx = C0 if (k & 1) == 0 else C1
        cmul(a, nx, cur, Z3)
        emit_row(nx, XROW[e], PK0 if (k & 1) == 0 else PK1, True)
        cur = nx
    a(f"s_branch {lDone}")
    a(f"{lX1}:")
    cpow(a, Z1, 512, AA, BB, T)
    cpow(a, Z2, 256, AA, BB, T)
    cpow(a, Z3, 4, AA, BB, T)
    cmul(a, C0, WW, Z1); emit_row(C0, XROW[512], PK0, True)
    cmul(a, C2, C0, Z3); emit_row(C2, XROW[516], PK1, True)
    cmul(a, C1, C0, Z2); emit_row(C1, XROW[768], PK0, True)
    cmul(a, C2, C1, Z3); emit_row(C2, XROW[772], PK1, True)
    cur = C1
    for k, e in enumerate([1024, 1280, 1536, 1792, 2048]):
        nx = C0 if (k & 1) == 0 else C1
        cmul(a, nx, cur, Z2)
        emit_row(nx, XROW[e], PK0 if (k & 1) == 0 else PK1, True)
        cur = nx
    a(f"s_branch {lDone}")
    a(f"{lY}:")
    wave_max(a, [M1])
    a(f"v_readlane_b32 s92, v{M1}, 63")
    a("s_nop 1")
    a(f"v_subrev_f32 v{AA}, s92, v{AA}")
    a(f"v_subrev_f32 v{AA+1}, s92, v{AA+1}")
    cpow(a, Z1, 8, AA, BB, T)
    a("s_cmp_ge_u32 s3, 2")
    a(f"s_cselect_b32 s4, {fhex(128.0)}, 0")
    a(f"s_cselect_b32 s5, {16*ROWB}, 0")
    a(f"v_add_u32 v{AD}, s5, v{AD}")
    for i in range(2):
        a(f"v_mul_f32 v{T+i}, s4, v{AA+i}")
        a(f"v_mul_f32 v{T+2+i}, s4, v{BB+i}")
    for i in range(2):
        a(f"v_exp_f32 v{T+i}, v{T+i}")
        a(f"v_fract_f32 v{T+2+i}, v{T+2+i}")
    for i in range(2):
        a(f"v_cos_f32 v{C1+i}, v{T+2+i}")
        a(f"v_sin_f32 v{C1+2+i}, v{T+2+i}")
    a("s_nop 0")
    a(f"v_pk_mul_f32 v[{C1}:{C1+1}], v[{C1}:{C1+1}], v[{T}:{T+1}]")
    a(f"v_pk_mul_f32 v[{C1+2}:{C1+3}], v[{C1+2}:{C1+3}], v[{T}:{T+1}]")
    emit_row(C1, 0, PK1, False)
    cur = C1
    for j in range(1, 16):
        nx = C0 if (j & 1) else C1
        cmul(a, nx, cur, Z1)
        emit_row(nx, j, PK0 if (j & 1) else PK1, False)
        cur = nx
    a(f"{lDone}:")
    a("s_waitcnt lgkmcnt(0)")

def ssm_tstep(a, R):
    OPS = R
    ACC = R + 128
    T = R + 144
    a("v_and_b32 v2, 31, v0")
    a("v_lshrrev_b32 v3, 5, v0")
    a(f"v_mul_u32_u24 v4, {ROWB}, v2")
    a("v_lshl_add_u32 v4, v3, 4, v4")
    a(f"s_mul_i32 s4, s51, {CHT}")
    a(f"s_add_u32 s4, s4, {SL.XY}")
    a("v_add_u32 v4, s4, v4")
    for k in range(16):
        a(f"ds_read_b128 v[{OPS+8*k}:{OPS+8*k+3}], v4 offset:{32*k}")
        a(f"ds_read_b128 v[{OPS+8*k+4}:{OPS+8*k+7}], v4 offset:{XT + 32*k}")
        if k >= 4:
            kk = k - 4
            a("s_waitcnt lgkmcnt(8)")
            src = "0" if kk == 0 else f"v[{ACC}:{ACC+15}]"
            a(f"v_mfma_f32_32x32x16_f16 v[{ACC}:{ACC+15}], v[{OPS+8*kk}:{OPS+8*kk+3}], v[{OPS+8*kk+4}:{OPS+8*kk+7}], {src}")
    for kk in range(12, 16):
        a(f"s_waitcnt lgkmcnt({2*(15-kk)})")
        a(f"v_mfma_f32_32x32x16_f16 v[{ACC}:{ACC+15}], v[{OPS+8*kk}:{OPS+8*kk+3}], v[{OPS+8*kk+4}:{OPS+8*kk+7}], v[{ACC}:{ACC+15}]")
    a(f"v_mov_b32 v{T}, s92")
    a(f"v_cvt_f32_i32 v{T+1}, s93")
    a("v_lshlrev_b32 v5, 3, v2")
    a("v_lshl_add_u32 v6, v3, 2, v5")
    a("v_lshl_add_u32 v7, v3, 9, v5")
    a(f"v_cvt_f32_u32 v{T+2}, v6")
    a(f"v_cvt_f32_u32 v{T+3}, v7")
    a(f"v_fma_f32 v{T+2}, v{T+2}, v{T}, v{T+1}")
    a(f"v_fma_f32 v{T+3}, v{T+3}, v{T}, v{T+1}")
    E = [0, 1, 2, 3, 256, 258, 512, 768, 1024, 1280, 2048]
    S = T + 4
    for i, e in enumerate(E):
        b = T + 2 if i < 8 else T + 3
        a(f"v_fmamk_f32 v{S+i}, v{T}, {fhex(float(e))}, v{b}")
    for i in range(11):
        a(f"v_exp_f32 v{S+i}, v{S+i}")
    a("v_cmp_eq_u32 vcc, 0, v0")
    a("v_mov_b32 v8, s91")
    a(f"s_mul_i32 s4, s51, {KEB}")
    a(f"s_add_u32 s4, s4, {SL.KE + 512}")
    a("v_cndmask_b32 v8, 0, v8, vcc")
    a("v_lshl_add_u32 v6, v6, 1, s4")
    a("v_lshl_add_u32 v7, v7, 1, s4")
    a("s_nop 4")
    a(f"v_fma_f32 v{ACC}, v{ACC}, v{S}, v8")
    for i in range(1, 11):
        a(f"v_mul_f32 v{ACC+i}, v{ACC+i}, v{S+i}")
    for i in range(6):
        a(f"v_cvt_pk_bf16_f32 v{S+i}, v{ACC+2*i}, v{ACC+2*i+1}")
    a(f"ds_write_b64 v6, v[{S}:{S+1}]")
    a(f"ds_write_b16 v6, v{S+2} offset:{2*256}")
    a(f"ds_write_b16_d16_hi v6, v{S+2} offset:{2*258}")
    a(f"ds_write_b16 v6, v{S+3} offset:{2*512}")
    a(f"ds_write_b16_d16_hi v6, v{S+3} offset:{2*768}")
    a(f"ds_write_b16 v7, v{S+4} offset:{2*1024}")
    a(f"ds_write_b16_d16_hi v7, v{S+4} offset:{2*1280}")
    a(f"ds_write_b16 v7, v{S+5} offset:{2*2048}")
    a("s_waitcnt lgkmcnt(0)")

def ssm_expand(a, R):
    D, O = R, R + 12
    l2, l1, lgo, lend = a.label("LE2"), a.label("LE1"), a.label("LEG"), a.label("LEE")
    a("s_mov_b32 s4, 0x01000100")
    a("s_mov_b32 s5, 0x05040100")
    a("s_cmp_eq_u32 s3, 6")
    a(f"s_cbranch_scc1 {l2}")
    a("s_cmp_eq_u32 s3, 7")
    a(f"s_cbranch_scc1 {l1}")
    def rd():
        a(f"ds_read_b128 v[{D}:{D+3}], v4")
        a(f"ds_read_b128 v[{D+4}:{D+7}], v4 offset:16")
        a(f"ds_read_b32 v{D+8}, v4 offset:32")
        a("s_waitcnt lgkmcnt(0)")
    def dup(o, x): a(f"v_perm_b32 v{o}, v{x}, v{x}, s4")
    def mix(o, lo, hi): a(f"v_perm_b32 v{o}, v{hi}, v{lo}, s5")
    def wr():
        a(f"ds_write_b128 v4, v[{O}:{O+3}]")
        a(f"ds_write_b128 v4, v[{O+4}:{O+7}] offset:16")
    a(f"s_mul_i32 s6, s51, {KEB}")
    a(f"s_add_u32 s6, s6, {SL.KE + 512 + 2048}")
    a("v_lshl_add_u32 v4, v0, 5, s6")
    rd()
    dup(O, D); dup(O+1, D); mix(O+2, D, D+4); dup(O+3, D+4); dup(O+4, D+4); dup(O+5, D+4); dup(O+6, D+8); dup(O+7, D+8)
    wr()
    a(f"s_branch {lend}")
    a(f"{l2}:")
    a("v_lshrrev_b32 v5, 5, v0")
    a("v_and_b32 v6, 31, v0")
    a(f"v_mul_u32_u24 v5, {KEB}, v5")
    a("v_lshl_add_u32 v4, v6, 5, v5")
    a(f"v_add_u32 v4, {SL.KE + 512 + 1024}, v4")
    rd()
    dup(O, D); mix(O+1, D, D+2); dup(O+2, D+2); dup(O+3, D+4); dup(O+4, D+4); mix(O+5, D+4, D+6); dup(O+6, D+6); dup(O+7, D+8)
    wr()
    a(f"s_branch {lend}")
    a(f"{l1}:")
    a("v_bfe_u32 v5, v0, 4, 1")
    a("v_and_b32 v6, 15, v0")
    a(f"v_mul_u32_u24 v5, {KEB}, v5")
    a("v_lshl_add_u32 v4, v6, 5, v5")
    a(f"v_add_u32 v4, {SL.KE + 512 + 512}, v4")
    rd()
    for k in range(8):
        if k & 1: mix(O+k, D+k, D+k+1)
        else: dup(O+k, D+k)
    wr()
    a("v_lshrrev_b32 v5, 5, v0")
    a("v_and_b32 v6, 31, v0")
    a(f"v_mul_u32_u24 v5, {KEB}, v5")
    a("v_lshl_add_u32 v4, v6, 4, v5")
    a(f"v_add_u32 v4, {SL.KE}, v4")
    for i in range(4):
        a(f"v_mov_b32 v{D+i}, 0")
    a(f"ds_write_b128 v4, v[{D}:{D+3}]")
    a(f"{lend}:")
    a("s_waitcnt lgkmcnt(0)")

def ssm_u_loads(a, U):
    srd(a, 60, P['u'], 2048 * 1024)
    a("s_sub_u32 s4, s3, 4")
    a("s_lshl_b32 s4, s4, 19")
    a("s_lshl_b32 s5, s50, 1")
    a("s_add_u32 s4, s4, s5")
    a("v_lshlrev_b32 v2, 13, v0")
    a("v_add_u32 v2, s4, v2")
    a("v_subrev_u32 v3, 1024, v2")
    a("s_movk_i32 s5, 4096")
    for r in range(8):
        so = "0" if r < 4 else "s5"
        a(f"buffer_load_dword v{U+r}, v2, s[60:63], {so} offen offset:{(r&3)*1024}")
    a(f"buffer_load_dword v{U+8}, v3, s[60:63], 0 offen")

def ssm_u_store(a, U, O):
    a("s_mov_b32 s4, 0x05040100")
    a("s_mov_b32 s5, 0x07060302")
    row = lambda i: (U + i) if i >= 0 else (U + 8)
    for ch, sel in ((0, "s4"), (1, "s5")):
        for cp in range(2):
            for k in range(4):
                lo, hi = 7 - cp - 2 * k, 6 - cp - 2 * k
                a(f"v_perm_b32 v{O + 8*ch + 4*cp + k}, v{row(hi)}, v{row(lo)}, {sel}")
    a("s_sub_u32 s6, s3, 4")
    a("s_lshl_b32 s6, s6, 10")
    a(f"s_sub_u32 s6, {SL.UR + 16*255}, s6")
    a("v_lshlrev_b32 v2, 4, v0")
    a("v_sub_u32 v2, s6, v2")
    for ch in range(2):
        for cp in range(2):
            o = O + 8 * ch + 4 * cp
            a(f"ds_write_b128 v2, v[{o}:{o+3}] offset:{ch*URB + cp*URC}")
    a("v_bfe_u32 v3, v0, 1, 2")
    a("v_and_b32 v4, 1, v0")
    a(f"v_mul_u32_u24 v3, {URC}, v3")
    a("v_lshl_add_u32 v3, v4, 4, v3")
    a(f"v_add_u32 v3, {SL.UR + 4096}, v3")
    for i in range(4):
        a(f"v_mov_b32 v{O+16+i}, 0")
    a(f"ds_write_b128 v3, v[{O+16}:{O+19}]")
    a("s_waitcnt lgkmcnt(0)")

CV_A = 64
CV_ACC = 192
CV_B = 224
def ssm_conv_loadA(a):
    a("s_bfe_u32 s94, s3, 0x10001")
    a("v_and_b32 v2, 15, v0")
    a("v_lshrrev_b32 v3, 4, v0")
    a("v_and_b32 v4, 1, v0")
    a("v_lshlrev_b32 v5, 3, v3")
    a("v_sub_u32 v5, v5, v2")
    a("v_add_u32 v5, v5, v4")
    a("v_lshlrev_b32 v5, 1, v5")
    a("v_xor_b32 v4, 1, v4")
    a(f"v_mul_u32_u24 v4, {URC}, v4")
    a("v_add_u32 v5, v5, v4")
    a(f"s_mul_i32 s4, s51, {URB}")
    a("s_lshl_b32 s5, s94, 6")
    a("s_sub_u32 s4, s4, s5")
    for b in range(4):
        a(f"s_add_u32 s5, s4, {SL.UR + 2*2030 - 128*(8*b+7)}")
        a(f"v_add_u32 v{6+b}, s5, v5")
    n = 0
    for mu in range(32):
        b = mu // 8
        o = 32 * (8 * b + 7 - mu)
        r = CV_A + 4 * mu
        a(f"ds_read2_b32 v[{r}:{r+1}], v{6+b} offset0:{o} offset1:{o+1}")
        a(f"ds_read2_b32 v[{r+2}:{r+3}], v{6+b} offset0:{o+2} offset1:{o+3}")

def ssm_conv(a, sc1=False):
    a("v_and_b32 v2, 15, v0")
    a("v_lshrrev_b32 v3, 4, v0")
    a("v_lshlrev_b32 v4, 5, v2")
    a("v_lshl_add_u32 v4, v3, 4, v4")
    a(f"s_mul_i32 s4, s51, {KEB}")
    a("s_lshl_b32 s5, s94, 6")
    a("s_sub_u32 s4, s4, s5")
    a(f"s_add_u32 s4, s4, {SL.KE + 96}")
    a("v_add_u32 v10, s4, v4")
    NB = 4
    def rdB(i):
        r = CV_B + 4 * (i % NB)
        a(f"ds_read_b128 v[{r}:{r+3}], v10 offset:{128*i}")
    a("s_waitcnt lgkmcnt(0)")
    for i in range(NB - 1):
        rdB(i)
    started = set()
    for i in range(32):
        pi = i - 3
        if i + NB - 1 < 32:
            rdB(i + NB - 1)
            a(f"s_waitcnt lgkmcnt({NB-1})")
        else:
            a(f"s_waitcnt lgkmcnt({31 - i})")
        rb = CV_B + 4 * (i % NB)
        for c in range(8):
            mu = 4 * c - pi
            if mu < 0 or mu > 31: continue
            acc = CV_ACC + 4 * c
            src = f"v[{acc}:{acc+3}]" if c in started else "0"
            started.add(c)
            ra = CV_A + 4 * mu
            a(f"v_mfma_f32_16x16x32_bf16 v[{acc}:{acc+3}], v[{ra}:{ra+3}], v[{rb}:{rb+3}], {src}")
    srd(a, 60, P['ws'], 512 * 4096, off=WS_AT)
    a("v_lshlrev_b32 v5, 4, v0")
    a("s_sub_u32 s4, s3, 4")
    a("s_xor_b32 s5, s4, 2")
    a("s_lshl_b32 s4, s4, 12")
    a("s_lshl_b32 s5, s5, 12")
    a(f"v_add_u32 v5, {SL.RED}, v5")
    a("v_add_u32 v6, s4, v5")
    a("v_add_u32 v7, s5, v5")
    a("v_lshlrev_b32 v8, 5, v2")
    a("v_lshl_add_u32 v8, v3, 3, v8")
    a("s_add_u32 s6, s50, s51")
    a("s_lshl_b32 s6, s6, 12")
    a("s_lshl_b32 s7, s94, 11")
    a("s_add_u32 s6, s6, s7")
    lp1, lj = a.label("LP1"), a.label("LPJ")
    a("s_nop 4")
    a("s_cmp_eq_u32 s94, 1")
    a(f"s_cbranch_scc1 {lp1}")
    for c in range(4):
        r = CV_ACC + 16 + 4 * c
        a(f"ds_write_b128 v7, v[{r}:{r+3}] offset:{1024*c}")
    a(f"s_branch {lj}")
    a(f"{lp1}:")
    for c in range(4):
        r = CV_ACC + 4 * c
        a(f"ds_write_b128 v7, v[{r}:{r+3}] offset:{1024*c}")
    a("s_nop 1")
    for e in range(16):
        a(f"v_mov_b32 v{CV_ACC+e}, v{CV_ACC+16+e}")
    a(f"{lj}:")
    a("s_waitcnt lgkmcnt(0)")
    a("s_barrier")
    for c in range(4):
        a(f"ds_read_b128 v[{CV_A+4*c}:{CV_A+4*c+3}], v6 offset:{1024*c}")
    a("s_waitcnt lgkmcnt(0)")
    for e in range(16):
        a(f"v_add_f32 v{CV_ACC+e}, v{CV_ACC+e}, v{CV_A+e}")
    for e in range(8):
        a(f"v_cvt_pk_bf16_f32 v{CV_A+16+e}, v{CV_ACC+2*e}, v{CV_ACC+2*e+1}")
    for c in range(4):
        a(f"buffer_store_dwordx2 v[{CV_A+16+2*c}:{CV_A+17+2*c}], v8, s[60:63], s6 offen offset:{512*c}" + (" sc1" if sc1 else ""))

def gate_loads(a, G):
    a("s_lshl_b32 s4, s2, 3")
    a("s_add_u32 s4, s4, s3")
    a("s_lshl_b32 s5, s4, 10")
    a("v_lshlrev_b32 v2, 4, v0")
    a("v_add_u32 v3, s5, v2")
    a(f"global_load_dwordx4 v[{G}:{G+3}], v3, s[{P['u']}:{P['u']+1}]")
    a(f"global_load_dwordx4 v[{G+4}:{G+7}], v2, s[{P['gw']}:{P['gw']+1}]")

def gate_compute(a, G, sc1=False):
    T = G + 8
    a(f"v_mov_b32 v{T}, 0")
    for i in range(4):
        a(f"v_dot2_f32_bf16 v{T}, v{G+i}, v{G+4+i}, v{T}")
    a("s_nop 2")
    for ctl in ["row_ror:8", "row_ror:4", "row_ror:2", "row_ror:1", "row_bcast:15 row_mask:0xa", "row_bcast:31 row_mask:0xc"]:
        a("s_nop 1")
        a(f"v_add_f32_dpp v{T}, v{T}, v{T} {ctl}")
    a(f"v_cvt_pk_bf16_f32 v{T}, v{T}, v{T}")
    a(f"v_lshlrev_b32 v{T}, 16, v{T}")
    a(f"v_mul_f32 v{T}, {fhex(-LOG2E)}, v{T}")
    a(f"v_exp_f32 v{T}, v{T}")
    a("s_nop 0")
    a(f"v_add_f32 v{T}, 1.0, v{T}")
    a(f"v_rcp_f32 v{T}, v{T}")
    a("s_nop 0")
    a(f"v_cvt_pk_bf16_f32 v{T}, v{T}, v{T}")
    a(f"v_lshlrev_b32 v{T}, 16, v{T}")
    srd(a, 56, P['ws'], 8192, off=WS_G)
    a("s_lshl_b32 s4, s2, 3")
    a("s_add_u32 s4, s4, s3")
    a("s_lshl_b32 s4, s4, 2")
    a("v_cmp_eq_u32 vcc, 63, v0")
    a(f"v_mov_b32 v{T+1}, 0x100000")
    a("s_nop 0")
    a(f"v_cndmask_b32 v{T+1}, v{T+1}, 0, vcc")
    a(f"buffer_store_dword v{T}, v{T+1}, s[56:59], s4 offen" + (" sc1" if sc1 else ""))
```

```python
from asmlib import *
from phases import *
from ssm import *
import sys

def k_ssm():
    a = Asm(); a.nlabel = 100
    prologue(a)
    ssm_map(a)
    ssm_param_loads(a, 16)
    gate_loads(a, 24)
    a("s_cmp_lt_u32 s3, 4")
    a("s_cbranch_scc1 LS_nou")
    ssm_u_loads(a, 40)
    a("LS_nou:")
    ssm_gen_xy(a, 16, 64)
    gate_compute(a, 24)
    a("s_cmp_lt_u32 s3, 4")
    a("s_cbranch_scc1 LS_idle")
    ssm_u_store(a, 40, 64)
    a("s_barrier")
    a("s_cmp_ge_u32 s3, 6")
    a("s_cbranch_scc1 LS_not")
    ssm_tstep(a, 64)
    a("LS_not:")
    a("s_barrier")
    ssm_expand(a, 16)
    ssm_conv_loadA(a)
    a("s_barrier")
    ssm_conv(a)
    a("s_branch L_end")
    a("LS_idle:")
    for i in range(4):
        a("s_barrier")
    a("L_end:")
    a("s_endpgm")
    return a.text().replace("L_end", "L_end_ssm")

def k_g1():
    a = Asm(); a.nlabel = 200
    prologue(a)
    g1_map(a)
    a("s_cmp_ge_u32 s3, 4")
    a("s_cbranch_scc1 LG1_loader")
    g1_consumer(a)
    g1_epilogue(a)
    a("s_branch L_end")
    a("LG1_loader:")
    g1_loader(a)
    a("L_end:")
    a("s_endpgm")
    return a.text().replace("L_end", "L_end_g1")

def k_g2():
    a = Asm(); a.nlabel = 300
    prologue(a)
    g2_map(a)
    a("s_cmp_ge_u32 s3, 4")
    a("s_cbranch_scc1 LG2_loader")
    g2_consumer(a)
    g2_epilogue(a)
    a("s_branch L_end")
    a("LG2_loader:")
    g2_loader(a)
    a("L_end:")
    a("s_endpgm")
    return a.text().replace("L_end", "L_end_g2")

kernels = [("ssm_kernel", k_ssm(), 256, 102, 256), ("g1_kernel", k_g1(), 256, 102, 256), ("g2_kernel", k_g2(), 256, 102, 256)]
launches = [("ssm_kernel", 256, 512, SL.END), ("g1_kernel", 256, 512, G1_LDS), ("g2_kernel", 256, 512, G2_LDS)]
out = sys.argv[1] if len(sys.argv) > 1 else "v1.s"
open(out, "w").write(build_file(kernels, launches))
```
